```python
import torch

def _softmax(x, axis=-1):
    return torch.softmax(x, dim=axis)
def _gelu(x):
    return torch.nn.functional.gelu(x, approximate="tanh")
def _silu(x):
    return torch.nn.functional.silu(x)
def _sigmoid(x):
    return torch.sigmoid(x)
def _layernorm(x, axis=-1, eps=1e-5):
    m = x.mean(dim=axis, keepdim=True)
    v = x.var(dim=axis, keepdim=True, unbiased=False)
    return (x - m) / torch.sqrt(v + eps)
def _scatter_add(tgt, idx, src, axis=0):
    return tgt.clone().index_add_(axis, idx, src)
def _segment_sum(src, seg, n):
    out = torch.zeros((n,) + src.shape[1:], dtype=src.dtype)
    return out.index_add_(0, seg, src)
def _pad(x, pw):
    flat = tuple(v for pair in reversed(pw) for v in pair)
    return torch.nn.functional.pad(x, flat)

kernel_name = 'standalone__deep_cross_fibinet__recsys'

def setup_inputs():

    _w = (lambda a: (lambda t: t.to(torch.bfloat16) if t.is_floating_point() else t)(torch.as_tensor(a)))
    B, F, D = 4096, 26, 64
    V = min(1000, 100000)
    Fr = max(F // 2, 1)
    H = min(F * D, 256)
    return {
        "idx": _w((lambda lo, hi, *s: torch.randint(lo, hi, s))(0, V, B, F).to(torch.int64)),
        "table": _w((lambda *s: torch.randn(*s, dtype=torch.bfloat16) * 1.6)(V, D)),
        "se_w1": _w((lambda *s: torch.randn(*s, dtype=torch.bfloat16) * 1.6)(F, Fr)),
        "se_w2": _w((lambda *s: torch.randn(*s, dtype=torch.bfloat16) * 1.6)(Fr, F)),
        "w_bi": _w((lambda *s: torch.randn(*s, dtype=torch.bfloat16) * 0.05)(D, D) * (D ** -0.5)),
        "w_cross": _w((lambda *s: torch.randn(*s, dtype=torch.bfloat16) * 0.05)(2 * F * F * D) * 0.01),
        "w_deep1": _w((lambda *s: torch.randn(*s, dtype=torch.bfloat16) * 0.8)(F * D, H) * ((F * D) ** -0.5)),
        "w_deep2": _w((lambda *s: torch.randn(*s, dtype=torch.bfloat16) * 0.05)(H) * 0.01),
    }

def reference(idx, table, se_w1, se_w2, w_bi, w_cross, w_deep1, w_deep2):
    emb = table[idx]
    B = emb.shape[0]
    z = emb.mean(axis=-1)
    a = _sigmoid(_gelu(z @ se_w1) @ se_w2)
    v = a[:, :, None] * emb
    eW = torch.einsum('bfd,de->bfe', emb, w_bi)
    vW = torch.einsum('bfd,de->bfe', v, w_bi)
    p = torch.einsum('bie,bje->bije', eW, emb).reshape(B, -1)
    q = torch.einsum('bie,bje->bije', vW, v).reshape(B, -1)
    cross_feat = torch.concatenate([p, q], axis=-1)
    logit_cross = cross_feat @ w_cross
    h = _gelu(emb.reshape(B, -1) @ w_deep1)
    logit_deep = h @ w_deep2
    return logit_cross + logit_deep
```

```python
NAME="standalone__deep_cross_fibinet__recsys"
hdr=open('cdna_kernels/%s.s.ref'%NAME).read().split('\n')
out=[]
for l in hdr:
    if l.startswith('; @launch'):
        out.append('; @launch grid=(4096,1,1) block=(64,1,1) lds=16384')
        break
    out.append(l)
A=out.append
A('.amdgcn_target "amdgcn-amd-amdhsa--gfx950"')
A('.text')
A('.globl %s_kernel'%NAME)
A('.p2align 8')
A('.type %s_kernel,@function'%NAME)
A('%s_kernel:'%NAME)
def srd(d,p,n):
    A(f's_mov_b32 s{d}, s{p}'); A(f's_mov_b32 s{d+1}, s{p+1}'); A(f's_mov_b32 s{d+2}, {n}'); A(f's_mov_b32 s{d+3}, 0x00020000')
def gelu(x,t,u):
    A(f'v_mul_f32 v{t}, v{x}, v{x}')
    A(f'v_mov_b32 v{u}, 0x3d372713')
    A(f'v_fma_f32 v{t}, v{t}, v{u}, 1.0')
    A(f'v_mul_f32 v{t}, v{t}, v{x}')
    A(f'v_mul_f32 v{t}, 0xc0135761, v{t}')
    A(f'v_exp_f32 v{t}, v{t}')
    A('s_nop 0')
    A(f'v_add_f32 v{t}, 1.0, v{t}')
    A(f'v_rcp_f32 v{t}, v{t}')
    A('s_nop 0')
    A(f'v_mul_f32 v{x}, v{x}, v{t}')
def rbf(x):
    A(f'v_cvt_pk_bf16_f32 v{x}, v{x}, v{x}')
    A(f'v_lshlrev_b32 v{x}, 16, v{x}')
A('s_cmp_ge_u32 s2, 4096'); A('s_cbranch_scc1 L_end')
A('s_load_dwordx16 s[16:31], s[0:1], 0')
A('s_load_dwordx2 s[32:33], s[0:1], 64')
A('s_waitcnt lgkmcnt(0)')
srd(36,18,128000)
srd(40,20,676)
srd(44,22,676)
srd(48,24,8192)
srd(52,26,173056)
srd(56,28,851968)
srd(60,30,512)
srd(64,32,8192)
A('s_mul_i32 s3, s2, 104')
A('s_add_u32 s16, s16, s3'); A('s_addc_u32 s17, s17, 0')
A('s_load_dwordx16 s[68:83], s[16:17], 0')
A('s_load_dwordx8 s[84:91], s[16:17], 64')
A('s_load_dwordx2 s[92:93], s[16:17], 96')
A('v_lshlrev_b32 v1, 1, v0')
A('v_lshlrev_b32 v2, 2, v0')
A('s_waitcnt lgkmcnt(0)')
for f in range(26):
    A(f's_lshl_b32 s4, s{68+f}, 7')
    A(f'buffer_load_ushort v{10+f}, v1, s[36:39], s4 offen')
A('s_waitcnt vmcnt(0)')
for f in range(26):
    A(f'v_lshlrev_b32 v{10+f}, 16, v{10+f}')
    A(f'ds_write_b32 v2, v{10+f} offset:{f*256}')
A('s_waitcnt lgkmcnt(0)')
A('v_min_u32 v3, 25, v0')
A('v_lshlrev_b32 v3, 8, v3')
A('v_mov_b32 v4, 0')
for d in range(0,64,4):
    A(f'ds_read_b128 v[40:43], v3 offset:{d*4}')
    A('s_waitcnt lgkmcnt(0)')
    for k in range(4): A(f'v_add_f32 v4, v4, v{40+k}')
A('v_mul_f32 v4, 0x3c800000, v4')
rbf(4)
A('ds_write_b32 v2, v4 offset:6656')
A('s_waitcnt lgkmcnt(0)')
A('v_mov_b32 v5, 0')
A('v_min_u32 v3, 12, v0'); A('v_lshlrev_b32 v3, 1, v3')
A('v_mov_b32 v4, 0')
for f in range(26):
    A(f'buffer_load_ushort v40, v3, s[40:43], 0 offen offset:{f*26}')
    A(f'ds_read_b32 v41, v5 offset:{6656+f*4}')
    A('s_waitcnt vmcnt(0) lgkmcnt(0)')
    A('v_lshlrev_b32 v40, 16, v40')
    A('v_fmac_f32 v4, v40, v41')
rbf(4); gelu(4,40,41); rbf(4)
A('ds_write_b32 v2, v4 offset:6912')
A('s_waitcnt lgkmcnt(0)')
A('v_min_u32 v3, 25, v0'); A('v_lshlrev_b32 v3, 1, v3')
A('v_mov_b32 v4, 0')
for r in range(13):
    A(f'buffer_load_ushort v40, v3, s[44:47], 0 offen offset:{r*52}')
    A(f'ds_read_b32 v41, v5 offset:{6912+r*4}')
    A('s_waitcnt vmcnt(0) lgkmcnt(0)')
    A('v_lshlrev_b32 v40, 16, v40')
    A('v_fmac_f32 v4, v40, v41')
rbf(4)
A('v_mul_f32 v4, 0xbfb8aa3b, v4')
A('v_exp_f32 v4, v4'); A('s_nop 0'); A('v_add_f32 v4, 1.0, v4'); A('v_rcp_f32 v4, v4'); A('s_nop 0')
rbf(4)
A('ds_write_b32 v2, v4 offset:7168')
A('s_waitcnt lgkmcnt(0)')
for f in range(26):
    A(f'ds_read_b32 v41, v5 offset:{7168+f*4}')
    A('s_waitcnt lgkmcnt(0)')
    A(f'v_mul_f32 v{70+f}, v41, v{10+f}')
for f in range(26): A(f'v_mov_b32 v{100+f}, 0')
A('s_mov_b32 s4, 0')
A('v_mov_b32 v6, 0')
A('L_ew:')
A('buffer_load_ushort v40, v1, s[48:51], s4 offen')
for f in range(26): A(f'ds_read_b32 v{130+f}, v6 offset:{f*256}')
A('s_waitcnt vmcnt(0) lgkmcnt(0)')
A('v_lshlrev_b32 v40, 16, v40')
for f in range(26): A(f'v_fmac_f32 v{100+f}, v40, v{130+f}')
A('v_add_u32 v6, 4, v6')
A('s_add_u32 s4, s4, 128'); A('s_cmp_lt_u32 s4, 8192'); A('s_cbranch_scc1 L_ew')
for f in range(26): A(f'ds_write_b32 v2, v{100+f} offset:{8192+f*256}')
A('s_waitcnt lgkmcnt(0)')
A('v_mov_b32 v7, 0')
A('s_mov_b32 s4, 0')
A('v_mov_b32 v6, v2')
A('v_mov_b32 v8, 0')
A('L_cr:')
A('s_add_u32 s5, s4, 86528')
for j in range(26):
    A(f'buffer_load_ushort v{130+j}, v1, s[52:55], s4 offen offset:{j*128}')
    A(f'buffer_load_ushort v{160+j}, v1, s[52:55], s5 offen offset:{j*128}')
A('ds_read_b32 v40, v6 offset:8192')
A('ds_read_b32 v41, v8 offset:7168')
A('v_mov_b32 v42, 0'); A('v_mov_b32 v43, 0')
A('s_waitcnt vmcnt(0) lgkmcnt(0)')
for j in range(26):
    A(f'v_lshlrev_b32 v{130+j}, 16, v{130+j}')
    A(f'v_lshlrev_b32 v{160+j}, 16, v{160+j}')
    A(f'v_fmac_f32 v42, v{130+j}, v{10+j}')
    A(f'v_fmac_f32 v43, v{160+j}, v{70+j}')
A('v_fmac_f32 v42, v43, v41')
A('v_fmac_f32 v7, v42, v40')
A('v_add_u32 v6, 256, v6'); A('v_add_u32 v8, 4, v8')
A('s_add_u32 s4, s4, 3328'); A('s_cmp_lt_u32 s4, 86528'); A('s_cbranch_scc1 L_cr')
for k in range(4): A(f'v_mov_b32 v{50+k}, 0')
A('v_lshlrev_b32 v9, 3, v0')
A('s_mov_b32 s4, 0'); A('v_mov_b32 v6, 0')
A('L_dp:')
for u in range(8):
    A(f'buffer_load_dwordx2 v[{130+2*u}:{131+2*u}], v9, s[56:59], s4 offen offset:{u*512}')
    A(f'ds_read_b32 v{150+u}, v6 offset:{u*4}')
A('s_waitcnt vmcnt(0) lgkmcnt(0)')
for u in range(8):
    A(f'v_lshlrev_b32 v40, 16, v{130+2*u}')
    A(f'v_and_b32 v41, 0xffff0000, v{130+2*u}')
    A(f'v_lshlrev_b32 v42, 16, v{131+2*u}')
    A(f'v_and_b32 v43, 0xffff0000, v{131+2*u}')
    for k in range(4): A(f'v_fmac_f32 v{50+k}, v{40+k}, v{150+u}')
A('v_add_u32 v6, 32, v6')
A('s_add_u32 s4, s4, 4096'); A('s_cmp_lt_u32 s4, 851968'); A('s_cbranch_scc1 L_dp')
A('buffer_load_dwordx2 v[130:131], v9, s[60:63], 0 offen')
for k in range(4): gelu(50+k,40,41)
A('s_waitcnt vmcnt(0)')
A('v_lshlrev_b32 v40, 16, v130'); A('v_and_b32 v41, 0xffff0000, v130')
A('v_lshlrev_b32 v42, 16, v131'); A('v_and_b32 v43, 0xffff0000, v131')
for k in range(4): A(f'v_fmac_f32 v7, v{40+k}, v{50+k}')
A('ds_write_b32 v2, v7 offset:0')
A('s_waitcnt lgkmcnt(0)')
A('v_mov_b32 v4, 0')
for d in range(0,64,4):
    A(f'ds_read_b128 v[40:43], v5 offset:{d*4}')
    A('s_waitcnt lgkmcnt(0)')
    for k in range(4): A(f'v_add_f32 v4, v4, v{40+k}')
A('v_cvt_pk_bf16_f32 v4, v4, v4')
A('s_lshl_b32 s4, s2, 1')
A('v_cmp_eq_u32 vcc, 0, v0')
A('s_and_saveexec_b64 s[6:7], vcc')
A('buffer_store_short v4, v5, s[64:67], s4 offen')
A('L_end:')
A('s_endpgm')
A('.section .rodata,"a"')
A('.p2align 6')
A('.amdhsa_kernel %s_kernel'%NAME)
A('  .amdhsa_next_free_vgpr 192')
A('  .amdhsa_next_free_sgpr 102')
A('  .amdhsa_accum_offset 192')
A('  .amdhsa_group_segment_fixed_size 0')
A('  .amdhsa_kernarg_size 88')
A('  .amdhsa_user_sgpr_count 2')
A('  .amdhsa_user_sgpr_kernarg_segment_ptr 1')
A('  .amdhsa_system_sgpr_workgroup_id_x 1')
A('.end_amdhsa_kernel')
import sys
open(sys.argv[1],'w').write('\n'.join(out)+'\n')
```
